```python
import torch

def _softmax(x, axis=-1):
    return torch.softmax(x, dim=axis)
def _gelu(x):
    return torch.nn.functional.gelu(x, approximate="tanh")
def _silu(x):
    return torch.nn.functional.silu(x)
def _sigmoid(x):
    return torch.sigmoid(x)
def _layernorm(x, axis=-1, eps=1e-5):
    m = x.mean(dim=axis, keepdim=True)
    v = x.var(dim=axis, keepdim=True, unbiased=False)
    return (x - m) / torch.sqrt(v + eps)
def _scatter_add(tgt, idx, src, axis=0):
    return tgt.clone().index_add_(axis, idx, src)
def _segment_sum(src, seg, n):
    out = torch.zeros((n,) + src.shape[1:], dtype=src.dtype)
    return out.index_add_(0, seg, src)
def _pad(x, pw):
    flat = tuple(v for pair in reversed(pw) for v in pair)
    return torch.nn.functional.pad(x, flat)

kernel_name = 'standalone__gqa_softmax__decode'

def setup_inputs():

    _w = (lambda a: (lambda t: t.to(torch.bfloat16) if t.is_floating_point() else t)(torch.as_tensor(a)))
    B, Hq, Hkv, Sq, Sk, D = 4, 32, 16, 1, 4096, 128
    return {
        "q": _w((lambda *s: torch.randn(*s, dtype=torch.bfloat16) * 0.8)(B, Hq, Sq, D)),
        "k": _w((lambda *s: torch.randn(*s, dtype=torch.bfloat16) * 0.8)(B, Hkv, Sk, D)),
        "v": _w((lambda *s: torch.randn(*s, dtype=torch.bfloat16) * 0.05)(B, Hkv, Sk, D)),
    }

def reference(q, k, v):
    B, Hq, Sq, D = q.shape
    Hkv = k.shape[1]
    rep = Hq // Hkv
    k = (lambda x, n, axis: torch.repeat_interleave(x, n, dim=axis))(k, rep, axis=1)
    v = (lambda x, n, axis: torch.repeat_interleave(x, n, dim=axis))(v, rep, axis=1)
    scale = D ** -0.5
    scores = torch.einsum("bhqd,bhkd->bhqk", q, k) * scale
    p = _softmax(scores, axis=-1)
    return torch.einsum("bhqk,bhkd->bhqd", p, v)
```

```python
import sys, math

HEADER = """; Kernarg layout for this problem (48 bytes, ptrs only, base s[0:1]):
"""

def gen(nt=True):
    L = []
    e = L.append
    NT = " nt" if nt else ""
    c1 = (128 ** -0.5) * math.log2(math.e)
    import struct
    c1_bits = struct.unpack("<I", struct.pack("<f", c1))[0]
    KV = 64
    Q0, Q1 = 8, 12
    S = 16
    T = 32
    MASK = 36
    A = 40
    O = 48
    e(HEADER.rstrip())
    e("; @launch grid=(256,1,1) block=(1024,1,1) lds=16640")
    e('.amdgcn_target "amdgcn-amd-amdhsa--gfx950"')
    e(".text")
    e(".globl standalone__gqa_softmax__decode_kernel")
    e(".p2align 8")
    e(".type standalone__gqa_softmax__decode_kernel,@function")
    e("standalone__gqa_softmax__decode_kernel:")
    e("  s_cmp_ge_u32 s2, 256")
    e("  s_cbranch_scc1 L_end")
    e("  s_load_dwordx8 s[4:11], s[0:1], 0")
    e("  s_load_dwordx4 s[12:15], s[0:1], 32")
    e("  v_lshrrev_b32 v1, 6, v0")
    e("  v_and_b32 v0, 63, v0")
    e("  v_readfirstlane_b32 s3, v1")
    e("  v_lshlrev_b32 v1, 4, v0")
    e("  v_and_b32 v2, 0xf0, v1")
    e("  s_lshl_b32 s40, s2, 4")
    e("  s_lshr_b32 s42, s2, 2")
    e("  s_lshl_b32 s43, s42, 9")
    e("  s_movk_i32 s44, 0x1000")
    e("  s_movk_i32 s45, 0x2000")
    e("  s_movk_i32 s46, 0x3000")
    e("  s_add_u32 s40, s40, s3")
    e("  s_lshl_b32 s41, s40, 14")
    e("  s_movk_i32 s18, 0x4000")
    e("  s_mov_b32 s19, 0x20000")
    e("  s_movk_i32 s22, 0x4000")
    e("  s_mov_b32 s23, 0x20000")
    e("  s_movk_i32 s26, 0x200")
    e("  s_mov_b32 s27, 0x20000")
    e("  s_waitcnt lgkmcnt(0)")
    e("  s_add_u32 s24, s4, s43")
    e("  s_addc_u32 s25, s5, 0")
    e("  s_add_u32 s16, s6, s41")
    e("  s_addc_u32 s17, s7, 0")
    e("  s_add_u32 s20, s8, s41")
    e("  s_addc_u32 s21, s9, 0")
    e(f"  buffer_load_dwordx4 v[{Q0}:{Q0+3}], v2, s[24:27], 0 offen")
    e(f"  buffer_load_dwordx4 v[{Q1}:{Q1+3}], v2, s[24:27], 0 offen offset:256")
    soff = ["0", "s44", "s45", "s46"]
    def kvload(j, srd):
        r = KV + 4 * j
        off = (j & 3) * 1024
        offs = f" offset:{off}" if off else ""
        e(f"  buffer_load_dwordx4 v[{r}:{r+3}], v1, s[{srd}:{srd+3}], {soff[j>>2]} offen{offs}{NT}")
    for j in range(16):
        kvload(j, 16)
    e("  v_and_b32 v3, 1, v0")
    e("  v_lshlrev_b32 v3, 4, v3")
    e("  v_mov_b32 v4, 0xffff")
    e("  v_lshlrev_b32 v4, v3, v4")
    e("  v_bfe_u32 v3, v0, 1, 2")
    for r in range(4):
        e(f"  v_cmp_eq_u32 vcc, {r}, v3")
        e("  s_nop 1")
        e(f"  v_cndmask_b32 v{MASK+r}, 0, v4, vcc")
    e("  v_bfe_u32 v5, v0, 3, 1")
    e("  v_lshlrev_b32 v5, 6, v5")
    e("  s_lshl_b32 s47, s3, 2")
    e("  v_add_u32 v6, s47, v5")
    e("  v_lshrrev_b32 v7, 5, v0")
    e("  v_lshlrev_b32 v7, 6, v7")
    e(f"  s_mov_b32 s48, {hex(c1_bits)}")
    e("  s_mov_b32 s49, 0x3f80")
    e("  s_lshl_b32 s50, s42, 13")
    e("  s_add_u32 s28, s14, s50")
    e("  s_addc_u32 s29, s15, 0")
    e("  s_movk_i32 s30, 0x2000")
    e("  s_mov_b32 s31, 0x20000")
    e("  s_add_u32 s32, s10, s43")
    e("  s_addc_u32 s33, s11, 0")
    e("  s_movk_i32 s34, 0x200")
    e("  s_mov_b32 s35, 0x20000")
    e("  s_mov_b32 s36, s12")
    e("  s_mov_b32 s37, s13")
    e("  s_movk_i32 s38, 0x100")
    e("  s_mov_b32 s39, 0x20000")
    e("  s_and_b32 s51, s2, 3")
    e("  s_lshl_b32 s51, s51, 11")
    e("  s_lshl_b32 s52, s42, 2")
    e("  s_lshl_b32 s53, s3, 10")
    def red(j):
        t0, t1 = T + 2 * (j & 1), T + 2 * (j & 1) + 1
        s = S + j
        return [
            [f"  v_add_f32_dpp v{s}, v{t0}, v{t0} row_ror:8 row_mask:0xf bank_mask:0x3",
             f"  v_add_f32_dpp v{s}, v{t1}, v{t1} row_ror:8 row_mask:0xf bank_mask:0xc"],
            [f"  v_add_f32_dpp v{s}, v{s}, v{s} row_half_mirror row_mask:0xf bank_mask:0xf"],
            [f"  v_add_f32_dpp v{s}, v{s}, v{s} quad_perm:[1,0,3,2] row_mask:0xf bank_mask:0xf"],
            [f"  v_add_f32_dpp v{s}, v{s}, v{s} quad_perm:[2,3,0,1] row_mask:0xf bank_mask:0xf"],
        ]
    for j in range(16):
        t0, t1 = T + 2 * (j & 1), T + 2 * (j & 1) + 1
        r = KV + 4 * j
        e("  s_waitcnt vmcnt(15)")
        rr = red(j - 1) if j > 0 else [[], [], [], []]
        for k in range(4):
            c0 = "0" if k == 0 else f"v{t0}"
            cc1 = "0" if k == 0 else f"v{t1}"
            e(f"  v_dot2_f32_bf16 v{t0}, v{r+k}, v{Q0+k}, {c0}")
            e(f"  v_dot2_f32_bf16 v{t1}, v{r+k}, v{Q1+k}, {cc1}")
            for x in rr[k]:
                e(x)
        kvload(j, 20)
    rr = red(15)
    e("  s_nop 1")
    for k in range(4):
        for x in rr[k]:
            e(x)
        e("  s_nop 1")
    e(f"  v_max3_f32 v52, v{S}, v{S+1}, v{S+2}")
    e(f"  v_max3_f32 v53, v{S+3}, v{S+4}, v{S+5}")
    e(f"  v_max3_f32 v54, v{S+6}, v{S+7}, v{S+8}")
    e(f"  v_max3_f32 v55, v{S+9}, v{S+10}, v{S+11}")
    e(f"  v_max3_f32 v56, v{S+12}, v{S+13}, v{S+14}")
    e(f"  v_max3_f32 v52, v52, v53, v{S+15}")
    e("  v_max3_f32 v54, v54, v55, v56")
    e("  v_max_f32 v52, v52, v54")
    def xrow(op):
        e("  v_mov_b32 v53, v52")
        e("  s_nop 1")
        e("  v_permlane16_swap_b32 v52, v53")
        e(f"  {op} v52, v52, v53")
        e("  v_mov_b32 v53, v52")
        e("  s_nop 1")
        e("  v_permlane32_swap_b32 v52, v53")
        e(f"  {op} v52, v52, v53")
    xrow("v_max_f32")
    e("  ds_write_b32 v6, v52")
    e("  s_waitcnt lgkmcnt(0)")
    e("  s_barrier")
    for k in range(4):
        e(f"  ds_read_b128 v[{40+4*k}:{43+4*k}], v5 offset:{16*k}")
    e("  s_waitcnt lgkmcnt(0)")
    def max16(b, dst):
        e(f"  v_max3_f32 v{b}, v{b}, v{b+1}, v{b+2}")
        e(f"  v_max3_f32 v{b+3}, v{b+3}, v{b+4}, v{b+5}")
        e(f"  v_max3_f32 v{b+6}, v{b+6}, v{b+7}, v{b+8}")
        e(f"  v_max3_f32 v{b+9}, v{b+9}, v{b+10}, v{b+11}")
        e(f"  v_max3_f32 v{b+12}, v{b+12}, v{b+13}, v{b+14}")
        e(f"  v_max3_f32 v{b}, v{b}, v{b+3}, v{b+15}")
        e(f"  v_max3_f32 v{b+6}, v{b+6}, v{b+9}, v{b+12}")
        e(f"  v_max_f32 v{dst}, v{b}, v{b+6}")
    max16(40, 56)
    e("  v_mul_f32 v56, s48, v56")
    for j in range(16):
        e(f"  v_fma_f32 v{S+j}, v{S+j}, s48, -v56")
    for j in range(16):
        e(f"  v_exp_f32 v{S+j}, v{S+j}")
    for j in range(16):
        e(f"  v_cvt_pk_bf16_f32 v{S+j}, v{S+j}, v{S+j}")
    for j in range(16):
        c = "0" if j == 0 else "v52"
        e(f"  v_dot2_f32_bf16 v52, v{S+j}, s49, {c}")
    e("  s_nop 2")
    xrow("v_add_f32")
    e("  ds_write_b32 v6, v52 offset:128")
    e("  s_waitcnt lgkmcnt(0)")
    e("  s_barrier")
    e("  s_cmp_lg_u32 s3, 0")
    e("  s_cbranch_scc1 L_pv")
    for k in range(4):
        e(f"  ds_read_b128 v[{40+4*k}:{43+4*k}], v7 offset:{16*k}")
    e("  s_waitcnt lgkmcnt(0)")
    max16(40, 58)
    e("  v_mul_f32 v58, s48, v58")
    for k in range(4):
        e(f"  ds_read_b128 v[{40+4*k}:{43+4*k}], v7 offset:{128+16*k}")
    e("  s_waitcnt lgkmcnt(0)")
    for k in range(8):
        e(f"  v_add_f32 v{40+k}, v{40+k}, v{48+k}")
    for k in range(4):
        e(f"  v_add_f32 v{40+k}, v{40+k}, v{44+k}")
    e("  v_add_f32 v40, v40, v42")
    e("  v_add_f32 v41, v41, v43")
    e("  v_add_f32 v59, v40, v41")
    e("L_pv:")
    def ands(j):
        a = A + 4 * (j & 1)
        for r in range(4):
            e(f"  v_and_b32 v{a+r}, v{S+j}, v{MASK+r}")
    ands(0)
    for j in range(16):
        if j < 15:
            ands(j + 1)
        e(f"  s_waitcnt vmcnt({15-j})")
        a = A + 4 * (j & 1)
        r = KV + 4 * j
        c = "0" if j == 0 else f"v[{O}:{O+3}]"
        e(f"  v_mfma_f32_16x16x32_bf16 v[{O}:{O+3}], v[{a}:{a+3}], v[{r}:{r+3}], {c}")
    e("  v_add_u32 v2, s53, v1")
    e("  s_nop 7")
    e(f"  ds_write_b128 v2, v[{O}:{O+3}] offset:256")
    e("  s_waitcnt lgkmcnt(0)")
    e("  s_barrier")
    e("  s_cmp_lg_u32 s3, 0")
    e("  s_cbranch_scc1 L_end")
    for w in range(16):
        e(f"  ds_read_b128 v[{KV+4*w}:{KV+4*w+3}], v1 offset:{256+1024*w}")
    e("  v_lshlrev_b32 v3, 3, v0")
    e("  s_waitcnt lgkmcnt(8)")
    def pkadd(d, a, b):
        e(f"  v_pk_add_f32 v[{d}:{d+1}], v[{a}:{a+1}], v[{b}:{b+1}]")
        e(f"  v_pk_add_f32 v[{d+2}:{d+3}], v[{a+2}:{a+3}], v[{b+2}:{b+3}]")
    for w in range(4):
        pkadd(KV + 4 * w, KV + 4 * w, KV + 4 * (w + 4))
    for w in range(2):
        pkadd(KV + 4 * w, KV + 4 * w, KV + 4 * (w + 2))
    pkadd(KV, KV, KV + 4)
    e("  s_waitcnt lgkmcnt(0)")
    B = KV + 32
    for w in range(4):
        pkadd(B + 4 * w, B + 4 * w, B + 4 * (w + 4))
    for w in range(2):
        pkadd(B + 4 * w, B + 4 * w, B + 4 * (w + 2))
    pkadd(B, B, B + 4)
    pkadd(O, KV, B)
    e(f"  buffer_store_dwordx4 v[{O}:{O+3}], v1, s[28:31], s51 offen sc1")
    e("  buffer_store_dwordx2 v[58:59], v3, s[28:31], s51 offen offset:1024 sc1")
    e("  v_mov_b32 v4, 1")
    e("  s_waitcnt vmcnt(0)")
    e("  s_mov_b64 exec, 1")
    e("  buffer_atomic_add v4, off, s[36:39], s52 sc0")
    e("  s_waitcnt vmcnt(0)")
    e("  s_mov_b64 exec, -1")
    e("  v_readfirstlane_b32 s54, v4")
    e("  s_nop 3")
    e("  s_cmp_lg_u32 s54, 3")
    e("  s_cbranch_scc1 L_end")
    for s in range(4):
        so = "0" if s < 2 else "s44"
        o1 = (s & 1) * 2048
        offs = f" offset:{o1}" if o1 else ""
        e(f"  buffer_load_dwordx4 v[{KV+4*s}:{KV+4*s+3}], v1, s[28:31], {so} offen{offs} sc1")
        e(f"  buffer_load_dwordx2 v[{80+2*s}:{81+2*s}], v3, s[28:31], {so} offen offset:{o1+1024} sc1")
    e("  v_lshrrev_b32 v4, 5, v0")
    e("  v_lshlrev_b32 v4, 8, v4")
    e("  v_and_b32 v5, 15, v0")
    e("  v_lshl_add_u32 v4, v5, 4, v4")
    e("  v_bfe_u32 v5, v0, 4, 1")
    e("  v_lshl_add_u32 v4, v5, 3, v4")
    e("  s_waitcnt vmcnt(0)")
    e("  v_max3_f32 v52, v80, v82, v84")
    e("  v_max_f32 v52, v52, v86")
    for s in range(4):
        e(f"  v_sub_f32 v{80+2*s}, v{80+2*s}, v52")
    for s in range(4):
        e(f"  v_exp_f32 v{80+2*s}, v{80+2*s}")
    e("  s_nop 0")
    e("  v_mul_f32 v53, v80, v81")
    for s in range(1, 4):
        e(f"  v_fmac_f32 v53, v{80+2*s}, v{81+2*s}")
    e("  v_rcp_f32 v53, v53")
    for r in range(4):
        e(f"  v_mul_f32 v{O+r}, v80, v{KV+r}")
    for s in range(1, 4):
        for r in range(4):
            e(f"  v_fmac_f32 v{O+r}, v{80+2*s}, v{KV+4*s+r}")
    for r in range(4):
        e(f"  v_mul_f32 v{O+r}, v{O+r}, v53")
    e(f"  v_cvt_pk_bf16_f32 v{O}, v{O}, v{O+1}")
    e(f"  v_cvt_pk_bf16_f32 v{O+1}, v{O+2}, v{O+3}")
    e(f"  buffer_store_dwordx2 v[{O}:{O+1}], v4, s[32:35], 0 offen")
    e("L_end:")
    e("  s_endpgm")
    e('.section .rodata,"a"')
    e(".p2align 6")
    e(".amdhsa_kernel standalone__gqa_softmax__decode_kernel")
    e("  .amdhsa_next_free_vgpr 128")
    e("  .amdhsa_next_free_sgpr 64")
    e("  .amdhsa_accum_offset 128")
    e("  .amdhsa_group_segment_fixed_size 0")
    e("  .amdhsa_kernarg_size 48")
    e("  .amdhsa_user_sgpr_count 2")
    e("  .amdhsa_user_sgpr_kernarg_segment_ptr 1")
    e("  .amdhsa_system_sgpr_workgroup_id_x 1")
    e(".end_amdhsa_kernel")
    return "\n".join(L) + "\n"

if __name__ == "__main__":
    nt = "--no-nt" not in sys.argv
    out = [a for a in sys.argv[1:] if not a.startswith("--")][0]
    open(out, "w").write(gen(nt))
```

```python
import sys
HEADER = open('gen1.py').read().split('"""')[1]
def wrap(body, grid, block, lds, vgpr, sgpr=64):
    L=[HEADER.rstrip(), f"; @launch grid=({grid},1,1) block=({block},1,1) lds={lds}",
       '.amdgcn_target "amdgcn-amd-amdhsa--gfx950"', ".text", ".globl standalone__gqa_softmax__decode_kernel",
       ".p2align 8", ".type standalone__gqa_softmax__decode_kernel,@function", "standalone__gqa_softmax__decode_kernel:"]
    L += body
    L += ["L_exit:", "  s_endpgm", '.section .rodata,"a"', ".p2align 6", ".amdhsa_kernel standalone__gqa_softmax__decode_kernel",
          f"  .amdhsa_next_free_vgpr {vgpr}", f"  .amdhsa_next_free_sgpr {sgpr}", f"  .amdhsa_accum_offset {vgpr}",
          "  .amdhsa_group_segment_fixed_size 0", "  .amdhsa_kernarg_size 48", "  .amdhsa_user_sgpr_count 2",
          "  .amdhsa_user_sgpr_kernarg_segment_ptr 1", "  .amdhsa_system_sgpr_workgroup_id_x 1", ".end_amdhsa_kernel"]
    return "\n".join(L)+"\n"

def empty(grid, block):
    return wrap([], grid, block, 0, 128)

def stream(grid, block, depth, nt=" nt", vg=0, order="alt", xor=0, pat="wave", asym=0):
    wpb = block//64
    nw = grid*wpb
    per = (64<<20)//nw
    nld = per//1024
    b=[]
    e=b.append
    e(f"  s_cmp_ge_u32 s2, {grid}")
    e("  s_cbranch_scc1 L_exit")
    e("  s_memrealtime s[64:65]")
    e("  s_load_dwordx8 s[4:11], s[0:1], 0")
    e("  s_load_dwordx4 s[12:15], s[0:1], 32")
    e("  s_getreg_b32 s70, hwreg(HW_REG_XCC_ID)")
    e("  s_getreg_b32 s71, hwreg(HW_REG_HW_ID)")
    e("  v_lshrrev_b32 v1, 6, v0")
    e("  v_and_b32 v0, 63, v0")
    e("  v_readfirstlane_b32 s3, v1")
    e("  v_lshlrev_b32 v1, 4, v0")
    e(f"  s_mul_i32 s40, s2, {wpb}")
    e("  s_add_u32 s40, s40, s3")
    e(f"  s_xor_b32 s42, s2, {xor}")
    if pat=="wave":
        e(f"  s_mul_i32 s42, s42, {wpb}")
        e("  s_add_u32 s42, s42, s3")
        e(f"  s_mul_i32 s41, s42, {per}")
        nrec=per; stride=1024
    elif pat=="wg":
        e(f"  s_mul_i32 s41, s42, {per*wpb}")
        e("  s_lshl_b32 s43, s3, 10")
        e("  s_add_u32 s41, s41, s43")
        nrec=per*wpb-(wpb-1)*1024; stride=1024*wpb
    elif pat=="grp":
        e("  s_lshr_b32 s43, s42, 2")
        e(f"  s_mul_i32 s41, s43, {per*wpb*4}")
        e("  s_and_b32 s43, s42, 3")
        e(f"  s_mul_i32 s43, s43, {wpb}")
        e("  s_add_u32 s43, s43, s3")
        e("  s_lshl_b32 s43, s43, 10")
        e("  s_add_u32 s41, s41, s43")
        nrec=per*wpb*4-(wpb*4-1)*1024; stride=1024*wpb*4
    elif pat=="all":
        e(f"  s_mul_i32 s42, s42, {wpb}")
        e("  s_add_u32 s42, s42, s3")
        e("  s_lshl_b32 s41, s42, 10")
        nrec=per*nw-(nw-1)*1024; stride=1024*nw
    e(f"  s_mov_b32 s18, {nrec}")
    e("  s_mov_b32 s19, 0x20000")
    e(f"  s_mov_b32 s22, {nrec}")
    e("  s_mov_b32 s23, 0x20000")
    e("  s_waitcnt lgkmcnt(0)")
    e("  s_add_u32 s16, s6, s41")
    e("  s_addc_u32 s17, s7, 0")
    e("  s_add_u32 s20, s8, s41")
    e("  s_addc_u32 s21, s9, 0")
    e("  v_mov_b32 v2, 0")
    seq=[]
    if order=="alt":
        for j in range(nld):
            seq.append((16,j)); seq.append((20,j))
    elif order=="kv":
        seq=[(16,j) for j in range(nld)]+[(20,j) for j in range(nld)]
    elif order=="c4":
        for j0 in range(0,nld,4):
            seq += [(16,j) for j in range(j0,j0+4)]+[(20,j) for j in range(j0,j0+4)]
    R=8
    for i,(srd,j) in enumerate(seq):
        if i>=depth:
            e(f"  s_waitcnt vmcnt({depth-1})")
            if i==depth: e("  s_memrealtime s[66:67]")
            r=R+4*(i%depth)
            e(f"  v_xor_b32 v2, v2, v{r}")
        r=R+4*(i%depth)
        off=(j*stride)
        e(f"  s_mov_b32 s44, {off - off%4096}")
        o=off%4096
        e(f"  buffer_load_dwordx4 v[{r}:{r+3}], v1, s[{srd}:{srd+3}], s44 offen offset:{o}{nt}")
    e("  s_waitcnt vmcnt(0)")
    e("  s_memrealtime s[68:69]")
    e("  s_lshl_b32 s56, s40, 7")
    e("  s_add_u32 s56, s56, 0x100000")
    e("  s_add_u32 s60, s14, s56")
    e("  s_addc_u32 s61, s15, 0")
    e("  s_movk_i32 s62, 0x80")
    e("  s_mov_b32 s63, 0x20000")
    e("  s_mov_b64 exec, 1")
    e("  s_waitcnt lgkmcnt(0)")
    for k in range(4):
        e(f"  v_mov_b32 v{8+2*k}, s{64+2*k}")
        e(f"  v_mov_b32 v{9+2*k}, s{65+2*k}")
        e(f"  buffer_store_dwordx2 v[{8+2*k}:{9+2*k}], off, s[60:63], 0 offset:{8*k if k<3 else 120}")
    return wrap(b, grid, block, 0, vg if vg else ((R+4*depth+7)//8)*8, 96)


import json
def emit(cfgs):
    try: old=json.load(open('st.json'))
    except Exception: old={}
    for k,c in cfgs.items():
        open(f'st_{k}.s','w').write(stream(**c))
    old.update(cfgs)
    json.dump(old, open('st.json','w'))
if __name__=="__main__":
  emit({
 'm': dict(grid=256, block=1024, depth=16, vg=128, order="alt", xor=1),
 'n': dict(grid=256, block=1024, depth=16, vg=128, order="alt", pat="wg"),
 'o': dict(grid=256, block=1024, depth=16, vg=128, order="alt", pat="all"),
 'p': dict(grid=256, block=1024, depth=16, vg=128, order="alt", pat="grp"),
 'q': dict(grid=256, block=1024, depth=16, vg=128, order="alt", nt=" sc1 nt"),
 'r': dict(grid=256, block=1024, depth=16, vg=128, order="alt", nt=" sc0 sc1 nt"),
 's': dict(grid=256, block=1024, depth=16, vg=128, order="alt", nt=" sc0 sc1"),
 't': dict(grid=256, block=1024, depth=8, vg=128, order="alt"),
 'u': dict(grid=256, block=1024, depth=8, vg=128, order="alt", pat="wg"),
 'v': dict(grid=256, block=1024, depth=4, vg=128, order="alt", pat="wg"),
  })
```

```python
import sys, json
sys.path.insert(0,'gen')
from gen_cal import wrap
def stream(xk=0, xv=0, depth=16, order="alt", nt=" nt", asym=0, ck=0, cv=0, lay=1, frac=0):
    b=[]; e=b.append
    e("  s_cmp_ge_u32 s2, 256")
    e("  s_cbranch_scc1 L_exit")
    e("  s_memrealtime s[64:65]")
    e("  s_load_dwordx8 s[4:11], s[0:1], 0")
    e("  s_load_dwordx4 s[12:15], s[0:1], 32")
    e("  s_getreg_b32 s70, hwreg(HW_REG_XCC_ID)")
    e("  s_getreg_b32 s71, hwreg(HW_REG_HW_ID)")
    e("  v_lshrrev_b32 v1, 6, v0")
    e("  v_and_b32 v0, 63, v0")
    e("  v_readfirstlane_b32 s3, v1")
    e("  v_lshlrev_b32 v1, 4, v0")
    e("  s_lshl_b32 s40, s2, 4")
    e("  s_add_u32 s40, s40, s3")
    e(f"  s_mov_b32 s48, {ck}")
    e(f"  s_mov_b32 s49, {cv}")
    e("  s_lshr_b32 s42, s2, 3")
    e("  s_lshl_b32 s41, s42, 21")
    e("  s_and_b32 s43, s2, 3")
    e("  s_lshl_b32 s43, s43, 19")
    e("  s_add_u32 s41, s41, s43")
    e(f"  s_lshl_b32 s43, s3, {15 if lay==0 else 14}")
    e("  s_add_u32 s41, s41, s43")
    e("  s_lshr_b32 s43, s2, 2")
    e("  s_xor_b32 s43, s43, s42")
    e("  s_mov_b32 s19, 0x20000")
    e("  s_mov_b32 s23, 0x20000")
    e(f"  s_mov_b32 s18, {0x6000 if lay==0 else 0x42000+0x2000}")
    e(f"  s_mov_b32 s22, {0x6000 if lay==0 else 0x42000+0x2000}")
    e("  v_mov_b32 v2, 0")
    e("  s_waitcnt lgkmcnt(0)")
    e("  s_xor_b32 s48, s48, s43")
    e(f"  s_xor_b32 s48, s48, {xk}")
    e("  s_and_b32 s48, s48, 1")
    e("  s_lshl_b32 s48, s48, 13")
    e("  s_add_u32 s48, s48, s41")
    e("  s_xor_b32 s49, s49, s43")
    e(f"  s_xor_b32 s49, s49, {xv}")
    e("  s_and_b32 s49, s49, 1")
    e("  s_lshl_b32 s49, s49, 13")
    e("  s_add_u32 s49, s49, s41")
    e("  s_add_u32 s16, s6, s48")
    e("  s_addc_u32 s17, s7, 0")
    e("  s_add_u32 s20, s8, s49")
    e("  s_addc_u32 s21, s9, 0")
    n=16
    seq=[]
    if order=="alt":
        for j in range(n): seq += [(16,j),(20,j)]
    elif order[0]=="c":
        c=int(order[1:])
        for j0 in range(0,n,c):
            js=range(j0,min(n,j0+c)); seq += [(16,j) for j in js]+[(20,j) for j in js]
    R=8
    for i,(srd,j) in enumerate(seq):
        r=R+4*(i%depth)
        if i>=depth:
            e(f"  s_waitcnt vmcnt({depth-1})")
            if i==depth: e("  s_memrealtime s[66:67]")
            e(f"  v_xor_b32 v2, v2, v{r}")
        off=(j%8)*1024 + (j//8)*(16384 if lay==0 else 262144)
        e(f"  s_mov_b32 s44, {off - off%4096}")
        e(f"  buffer_load_dwordx4 v[{r}:{r+3}], v1, s[{srd}:{srd+3}], s44 offen offset:{off%4096}{nt}")
    e("  s_waitcnt vmcnt(0)")
    e("  s_memrealtime s[68:69]")
    e("  s_lshl_b32 s56, s40, 7")
    e("  s_add_u32 s56, s56, 0x100000")
    e("  s_add_u32 s60, s14, s56")
    e("  s_addc_u32 s61, s15, 0")
    e("  s_movk_i32 s62, 0x80")
    e("  s_mov_b32 s63, 0x20000")
    e("  s_mov_b64 exec, 1")
    e("  s_waitcnt lgkmcnt(0)")
    for k in range(4):
        e(f"  v_mov_b32 v{8+2*k}, s{64+2*k}")
        e(f"  v_mov_b32 v{9+2*k}, s{65+2*k}")
        e(f"  buffer_store_dwordx2 v[{8+2*k}:{9+2*k}], off, s[60:63], 0 offset:{8*k if k<3 else 120}")
    return wrap(b, 256, 1024, 0, 128, 96)

cfgs={'LLa':dict(lay=0), 'LLb':dict(), 'LRb':dict(xv=1), 'LLbc4':dict(order="c4"), 'LLbd8':dict(depth=8), 'LLbd24':dict(depth=24)}
fs=[]
for k,c in cfgs.items():
    for ck in (0,1):
        for cv in (0,1):
            fn=f'exp/s5_{k}_{ck}{cv}'
            open(f'code/{fn}.s','w').write(stream(ck=ck,cv=cv,**c)); fs.append(fn)
print(" ".join(f"exp/s5_{k}_CC.co:256:1024:0:3" for k in cfgs)); print(json.dumps([f+".co" for f in fs]))
print(" ".join(f+".s" for f in fs))
```
